```python
import torch

def _softmax(x, axis=-1):
    return torch.softmax(x, dim=axis)
def _gelu(x):
    return torch.nn.functional.gelu(x, approximate="tanh")
def _silu(x):
    return torch.nn.functional.silu(x)
def _sigmoid(x):
    return torch.sigmoid(x)
def _layernorm(x, axis=-1, eps=1e-5):
    m = x.mean(dim=axis, keepdim=True)
    v = x.var(dim=axis, keepdim=True, unbiased=False)
    return (x - m) / torch.sqrt(v + eps)
def _scatter_add(tgt, idx, src, axis=0):
    return tgt.clone().index_add_(axis, idx, src)
def _segment_sum(src, seg, n):
    out = torch.zeros((n,) + src.shape[1:], dtype=src.dtype)
    return out.index_add_(0, seg, src)
def _pad(x, pw):
    flat = tuple(v for pair in reversed(pw) for v in pair)
    return torch.nn.functional.pad(x, flat)

kernel_name = 'concat_heads__linear_kernel_hedgehog__ssm_conv_s4d__prompt'

def setup_inputs():

    _w = (lambda a: (lambda t: t.to(torch.bfloat16) if t.is_floating_point() else t)(torch.as_tensor(a)))
    def _A_setup():
        B, S, D, H = 1, 2048, 448, 16
        Dh = D // H
        return {
            "x": _w((lambda *s: torch.randn(*s, dtype=torch.bfloat16) * 0.4)(B, S, D)),
            "wqkv": _w((lambda *s: torch.randn(*s, dtype=torch.bfloat16) * 0.4)(D, 3 * D)),
            "w_phi": _w((lambda *s: torch.randn(*s, dtype=torch.bfloat16) * 0.4)(H, Dh, Dh) * (Dh ** -0.5)),
            "wo": _w((lambda *s: torch.randn(*s, dtype=torch.bfloat16) * 0.05)(D, D)),
        }
    _A_in = _A_setup()

    def _B_setup():
        Bsz, L, D, N = 1, 2048, 448, 256
        return {
            "u": _w((lambda *s: torch.randn(*s, dtype=torch.bfloat16) * 0.05)(Bsz, L, D)),
            "log_A_real": _w((lambda *s: torch.randn(*s, dtype=torch.bfloat16) * 3.2)(D, N) * 0.5),
            "A_imag": _w((lambda *s: torch.randn(*s, dtype=torch.bfloat16) * 0.2)(D, N) * 3.14),
            "C_real": _w((lambda *s: torch.randn(*s, dtype=torch.bfloat16) * 3.2)(D, N) / N ** 0.5),
            "C_imag": _w((lambda *s: torch.randn(*s, dtype=torch.bfloat16) * 3.2)(D, N) / N ** 0.5),
            "log_dt": _w((lambda *s: torch.randn(*s, dtype=torch.bfloat16) * 0.2)(D) * 0.5 - 4.0),
            "D_skip": _w((lambda *s: torch.randn(*s, dtype=torch.bfloat16) * 0.4)(D)),
        }
    _B_in = _B_setup()

    return {
        "A_x": _A_in["x"],
        "A_wqkv": _A_in["wqkv"],
        "A_w_phi": _A_in["w_phi"],
        "A_wo": _A_in["wo"],
        "B_u": _B_in["u"],
        "B_log_A_real": _B_in["log_A_real"],
        "B_A_imag": _B_in["A_imag"],
        "B_C_real": _B_in["C_real"],
        "B_C_imag": _B_in["C_imag"],
        "B_log_dt": _B_in["log_dt"],
        "B_D_skip": _B_in["D_skip"],
    }

def reference(A_x, A_wqkv, A_w_phi, A_wo, B_u, B_log_A_real, B_A_imag, B_C_real, B_C_imag, B_log_dt, B_D_skip):
    def _A_ref(x, wqkv, w_phi, wo):
        B, S, D = x.shape
        H = 16; Dh = D // H
        qkv = (lambda x, *d: x.permute(*d))((x @ wqkv).reshape(B, S, 3, H, Dh), 2, 0, 3, 1, 4)
        q, k, v = qkv[0], qkv[1], qkv[2]
        pq = torch.einsum("bhsd,hdf->bhsf", q, w_phi)
        pk = torch.einsum("bhsd,hdf->bhsf", k, w_phi)
        phi_q = torch.concatenate([_softmax(pq, axis=-1), _softmax(-pq, axis=-1)], axis=-1)
        phi_k = torch.concatenate([_softmax(pk, axis=-1), _softmax(-pk, axis=-1)], axis=-1)
        kv = torch.einsum("bhsf,bhsd->bhfd", phi_k, v)
        z  = torch.einsum("bhsf->bhf", phi_k)
        num = torch.einsum("bhqf,bhfd->bhqd", phi_q, kv)
        den = torch.einsum("bhqf,bhf->bhq", phi_q, z)[..., None] + 1e-6
        o = num / den
        return (lambda x, *d: x.permute(*d))(o, 0, 2, 1, 3).reshape(B, S, D) @ wo

    def _B_ref(u, log_A_real, A_imag, C_real, C_imag, log_dt, D_skip):
        L = u.shape[1]
        dt = torch.exp(log_dt)
        A = -torch.exp(log_A_real) + 1j * A_imag
        C = (C_real + 1j * C_imag) * dt[:, None]
        pos = (lambda x, dt: x.to(dt))(torch.arange(L), log_dt.dtype)
        P = torch.exp((A * dt[:, None])[:, :, None] * pos[None, None, :])
        K = 2.0 * torch.einsum("dn,dnl->dl", C, P).real
        L2 = 2 * L
        u_t = (lambda x, *d: x.permute(*d))(u, 0, 2, 1)
        Kf = (lambda x, *a, **k: torch.fft.rfft(x.float(), *a, **k))(K, L2)
        Uf = (lambda x, *a, **k: torch.fft.rfft(x.float(), *a, **k))(u_t, L2)
        y = (lambda x, *a, **k: torch.fft.irfft(x, *a, **k).to(torch.bfloat16))(Uf * Kf[None, :, :], L2)[:, :, :L]
        y = (lambda x, *d: x.permute(*d))(y, 0, 2, 1)
        return y + u * D_skip[None, None, :]

    a = _A_ref(A_x, A_wqkv, A_w_phi, A_wo)
    b = _B_ref(B_u, B_log_A_real, B_A_imag, B_C_real, B_C_imag, B_log_dt, B_D_skip)
    return torch.concatenate([a, b], axis=-1)
```

```python
from dsl import *
NAME = "concat_heads__linear_kernel_hedgehog__ssm_conv_s4d__prompt"
WS_O    = 0x000000
WS_YT   = 0x200000
WS_UT   = 0x400000
WS_KVP  = 0x600000
WS_FLAG = 0x700000
WS_DBG  = 0x800000
WS_BYTES = 268435456
KA = dict(x=0, wqkv=8, wphi=16, wo=24, u=32, logA=40, Aim=48, Cr=56, Ci=64, logdt=72, D=80, out=88, dbg=96, ws=104)
SZ = dict(x=2048*448*2, wqkv=448*1344*2, wphi=16*28*28*2, wo=448*448*2, u=2048*448*2, logA=448*256*2, Aim=448*256*2,
          Cr=448*256*2, Ci=448*256*2, logdt=448*2, D=448*2, out=2048*896*2, dbg=256, ws=WS_BYTES)

def srd(a, sreg, name, ptr_sreg):
    a.e(f"s_mov_b32 s{sreg}, s{ptr_sreg}")
    a.e(f"s_and_b32 s{sreg+1}, s{ptr_sreg+1}, 0xffff")
    a.e(f"s_mov_b32 s{sreg+2}, {SZ[name]}")
    a.e(f"s_mov_b32 s{sreg+3}, 0x20000")

def kernel_text(label, body, vgpr, agpr=0, sgpr=100):
    accum = (vgpr + 3) // 4 * 4
    nfv = accum + agpr if agpr else vgpr
    t = f".globl {label}\n.p2align 8\n.type {label},@function\n{label}:\n{body}"
    kd = f""".amdhsa_kernel {label}
  .amdhsa_next_free_vgpr {nfv}
  .amdhsa_next_free_sgpr {sgpr}
  .amdhsa_accum_offset {accum}
  .amdhsa_group_segment_fixed_size 0
  .amdhsa_kernarg_size 112
  .amdhsa_user_sgpr_count 2
  .amdhsa_user_sgpr_kernarg_segment_ptr 1
  .amdhsa_system_sgpr_workgroup_id_x 1
  .amdhsa_float_denorm_mode_32 3
.end_amdhsa_kernel
"""
    return t, kd

def file_text(launches, kernels, header_comment=""):
    s = header_comment
    if len(launches) == 1 and launches[0][0] == NAME + "_kernel":
        l, g, b, lds = launches[0]
        s += f"; @launch grid=({g},1,1) block=({b},1,1) lds={lds}\n"
    else:
        for l, g, b, lds in launches:
            s += f"; @launch kernel={l} grid=({g},1,1) block=({b},1,1) lds={lds}\n"
    s += '.amdgcn_target "amdgcn-amd-amdhsa--gfx950"\n.text\n'
    for t, kd in kernels: s += t
    s += '.section .rodata,"a"\n'
    for t, kd in kernels: s += ".p2align 6\n" + kd
    return s
```

```python
import re

REG_RE = re.compile(r'(?<![\w.])(-?\|?)([vas])(\d+)(?![\w\[])|(?<![\w.])(-?\|?)([vas])\[(\d+):(\d+)\]')
def regs_of(tok):
    out = set()
    tok = tok.strip()
    for m in REG_RE.finditer(tok):
        if m.group(2):
            out.add((m.group(2), int(m.group(3))))
        else:
            for i in range(int(m.group(6)), int(m.group(7)) + 1):
                out.add((m.group(5), i))
    if re.search(r'(?<![\w])vcc(?![\w])', tok): out.add(('vcc', 0))
    if re.search(r'(?<![\w])exec(_lo|_hi)?(?![\w])', tok): out.add(('exec', 0))
    if re.search(r'(?<![\w])m0(?![\w])', tok): out.add(('m0', 0))
    return out

def split_ops(rest):
    ops, depth, cur = [], 0, ''
    for ch in rest:
        if ch in '[(': depth += 1
        if ch in '])': depth -= 1
        if ch == ',' and depth == 0:
            ops.append(cur.strip()); cur = ''
        else:
            cur += ch
    if cur.strip(): ops.append(cur.strip())
    return ops

TRANS = ('v_exp_f32', 'v_log_f32', 'v_rcp_f32', 'v_rsq_f32', 'v_sqrt_f32', 'v_sin_f32', 'v_cos_f32', 'v_rcp_iflag_f32')
class Ins:
    __slots__ = ('text', 'op', 'ops', 'dst', 'src', 'kind', 'tag', 'raw', 'mods')
    def __init__(self, text, tag=None, raw=False):
        self.text = text; self.tag = tag; self.raw = raw
        t = text.split(';')[0].strip()
        self.dst = set(); self.src = set(); self.kind = 'other'; self.ops = []; self.mods = ''
        if not t or t.endswith(':') or t.startswith('.'):
            self.op = None
            self.kind = 'label' if t.endswith(':') else ('directive' if t.startswith('.') else 'empty')
            return
        parts = t.split(None, 1)
        self.op = op = parts[0]
        rest = parts[1] if len(parts) > 1 else ''
        ops = split_ops(rest)
        if ops:
            last = ops[-1]
            mm = re.match(r'^(\S+(?:\s*\|)?)\s+(.*)$', last)
            if mm and not last.startswith('hwreg') :
                ops[-1] = mm.group(1); self.mods = mm.group(2)
        self.ops = ops
        R = [regs_of(o) for o in ops]
        allr = set().union(*R) if R else set()
        base = re.sub(r'_(e32|e64|dpp|sdwa)$', '', op)
        if op.startswith('v_mfma'):
            self.kind = 'mfma'; self.dst = R[0]; self.src = R[1] | R[2] | R[3]
        elif op.startswith('ds_'):
            self.kind = 'ds'
            if op.startswith('ds_read') or op.startswith('ds_bpermute') or op.startswith('ds_permute') or op.startswith('ds_swizzle'):
                self.dst = R[0]; self.src = set().union(*R[1:]) if len(R) > 1 else set()
                if 'd16' in op: self.src |= R[0]
            else:
                self.src = allr
        elif op.startswith('buffer_') or op.startswith('global_'):
            self.kind = 'vmem'
            lds = re.search(r'(?<!\w)lds(?!\w)', self.mods) is not None
            if op.startswith('buffer_load') and lds:
                self.kind = 'dma'; self.src = allr | {('m0', 0)}
            elif '_load' in op:
                self.dst = R[0]; self.src = set().union(*R[1:])
                if 'd16' in op: self.src |= R[0]
            elif 'atomic' in op:
                self.src = allr
                if re.search(r'(?<!\w)sc0(?!\w)', self.mods):
                    self.dst = R[0]
            elif op in ('buffer_wbl2', 'buffer_inv'):
                pass
            else:
                self.src = allr
        elif op.startswith('s_load') or op.startswith('s_buffer_load') or op in ('s_memtime', 's_memrealtime'):
            self.kind = 'smem'; self.dst = R[0]; self.src = set().union(*R[1:]) if len(R) > 1 else set()
        elif op.startswith('v_'):
            self.kind = 'valu'
            if base.startswith('v_cmpx'):
                self.dst = R[0] | {('exec', 0)}; self.src = set().union(*R[1:])
            elif base.startswith('v_permlane') and 'swap' in base:
                self.dst = R[0] | R[1]; self.src = R[0] | R[1]
            elif base in ('v_add_co_u32', 'v_sub_co_u32', 'v_subrev_co_u32', 'v_addc_co_u32', 'v_subb_co_u32', 'v_mad_u64_u32'):
                self.dst = R[0] | R[1]; self.src = set().union(*R[2:])
            else:
                self.dst = R[0]; self.src = set().union(*R[1:]) if len(R) > 1 else set()
                if base in ('v_fmac_f32', 'v_pk_fmac_f16', 'v_dot2c_f32_bf16', 'v_mac_f32', 'v_writelane_b32', 'v_fmac_f64') or 'dpp' in op or 'row_' in self.mods or 'quad_perm' in self.mods:
                    self.src |= R[0]
        elif op.startswith('s_'):
            self.kind = 'salu'
            if op in ('s_waitcnt', 's_barrier', 's_nop', 's_endpgm', 's_branch', 's_sleep', 's_setprio') or op.startswith('s_cbranch'):
                self.kind = {'s_waitcnt': 'wait', 's_nop': 'nop', 's_barrier': 'barrier'}.get(op, 'ctrl')
                if op in ('s_cbranch_vccz', 's_cbranch_vccnz'): self.src = {('vcc', 0)}
                if op in ('s_cbranch_execz', 's_cbranch_execnz'): self.src = {('exec', 0)}
            elif op.startswith('s_cmp') or op.startswith('s_bitcmp'):
                self.src = allr
            elif 'saveexec' in op:
                self.dst = R[0] | {('exec', 0)}; self.src = set().union(*R[1:]) | {('exec', 0)}
            else:
                self.dst = R[0] if R else set(); self.src = set().union(*R[1:]) if len(R) > 1 else set()
                if op in ('s_addk_i32', 's_mulk_i32', 's_cmov_b32', 's_cmov_b64'): self.src |= R[0]
    def base(self): return re.sub(r'_(e32|e64|dpp|sdwa)$', '', self.op) if self.op else None
    def passes(self):
        if 'mfma' not in (self.op or ''): return 0
        if '32x32x16' in self.op or '32x32x8' in self.op: return 8
        if '16x16x32' in self.op or '16x16x16' in self.op: return 4
        raise ValueError(self.op)
    def store_wide(self):
        return self.kind == 'vmem' and '_store' in self.op and ('x3' in self.op or 'x4' in self.op)

class Asm:
    def __init__(self):
        self.ins = []
    def e(self, text, tag=None, raw=False):
        for line in text.split('\n'):
            line = line.strip()
            if line: self.ins.append(Ins(line, tag, raw))
        return self
    def label(self, n): self.ins.append(Ins(n + ':'))
    def wait_vm_tag(self, tag):
        i = Ins('s_nop 0'); i.kind = 'waittag'; i.tag = ('vm', tag); self.ins.append(i)
    def wait_lgkm_tag(self, tag):
        i = Ins('s_nop 0'); i.kind = 'waittag'; i.tag = ('lgkm', tag); self.ins.append(i)
    def wait_all_lds(self):
        i = Ins('s_nop 0'); i.kind = 'waittag'; i.tag = ('lgkm', '*'); self.ins.append(i)
    def wait_all_vm(self):
        i = Ins('s_nop 0'); i.kind = 'waittag'; i.tag = ('vm', '*'); self.ins.append(i)
    def extend(self, other):
        self.ins.extend(other.ins if isinstance(other, Asm) else other)

def interleave(main, side, start=0, end=None, group=1):
    m = main.ins; groups = side
    if end is None: end = len(m)
    n = len(groups)
    if n == 0: return main
    out = Asm(); span = max(end - start, 1)
    pos = [start + (span * k) // n for k in range(n)]
    gi = 0
    for i, ins in enumerate(m):
        while gi < n and pos[gi] <= i:
            out.ins.extend(groups[gi]); gi += 1
        out.ins.append(ins)
    while gi < n:
        out.ins.extend(groups[gi]); gi += 1
    return out

def insert_waits(ins):
    out = []
    vm = []
    lg = []
    def emit_wait(vmn=None, lgn=None):
        parts = []
        if vmn is not None: parts.append('vmcnt(%d)' % min(vmn, 63))
        if lgn is not None: parts.append('lgkmcnt(%d)' % min(lgn, 15))
        w = Ins('s_waitcnt ' + ' '.join(parts)); out.append(w)
        apply_wait(w)
    def apply_wait(w):
        m = re.search(r'vmcnt\((\d+)\)', w.text)
        if m:
            n = int(m.group(1))
            while len(vm) > n: vm.pop(0)
        m = re.search(r'lgkmcnt\((\d+)\)', w.text)
        if m:
            n = int(m.group(1))
            if any(x['smem'] for x in lg):
                if n == 0: lg.clear()
            else:
                while len(lg) > n: lg.pop(0)
    for i in ins:
        if i.kind == 'waittag':
            which, tag = i.tag
            q = vm if which == 'vm' else lg
            idx = -1
            for k, x in enumerate(q):
                if tag == '*' or x['tag'] == tag: idx = k
            if idx >= 0:
                n = len(q) - 1 - idx
                if which == 'vm': emit_wait(vmn=n)
                else:
                    if any(x['smem'] for x in lg): n = 0
                    emit_wait(lgn=n)
            continue
        if i.kind == 'wait':
            out.append(i)
            if not i.raw: apply_wait(i)
            continue
        if i.kind in ('label', 'directive', 'empty'):
            out.append(i); continue
        touched = i.dst | i.src
        if not i.raw:
            need_vm = need_lg = None
            for k, x in enumerate(vm):
                if x['dst'] & touched: need_vm = len(vm) - 1 - k
            for k, x in enumerate(lg):
                if x['dst'] & touched:
                    need_lg = 0 if any(y['smem'] for y in lg) else len(lg) - 1 - k
            if need_vm is not None or need_lg is not None:
                emit_wait(need_vm, need_lg)
        out.append(i)
        if i.raw: continue
        if i.kind in ('vmem', 'dma') and i.op not in ('buffer_wbl2', 'buffer_inv'):
            vm.append(dict(dst=set(i.dst), tag=i.tag))
            if len(vm) > 63 + 0:
                pass
        elif i.kind == 'ds':
            lg.append(dict(dst=set(i.dst), tag=i.tag, smem=False))
        elif i.kind == 'smem':
            lg.append(dict(dst=set(i.dst), tag=i.tag, smem=True))
        if i.op == 's_endpgm':
            pass
    return out

def is_vgpr(r): return r[0] in ('v', 'a')
def insert_hazards(ins):
    out = []
    hist = []
    def states(i):
        if i.kind == 'nop':
            return int(i.ops[0], 0) + 1
        return 1
    for i in ins:
        if i.kind in ('label', 'directive', 'empty'):
            out.append(i); continue
        need = 0
        dist = 0
        b = i.base()
        isvalu = i.kind == 'valu'
        for p in reversed(hist):
            req = 0
            pv = p.kind == 'valu'
            if pv:
                vw = {r for r in p.dst if is_vgpr(r)}
                sw = {r for r in p.dst if r[0] in ('s', 'vcc')}
                if i.kind == 'mfma' and (vw & i.src): req = max(req, 2)
                if isvalu and ('permlane' in i.op or 'dpp' in i.op or 'row_' in i.mods or 'quad_perm' in i.mods) and (vw & i.src): req = max(req, 2)
                if isvalu and b in ('v_readfirstlane_b32', 'v_readlane_b32') and (vw & i.src): req = max(req, 1)
                if isvalu and (sw & i.src): req = max(req, 2)
                if isvalu and b in ('v_readlane_b32', 'v_writelane_b32') and (sw & i.src): req = max(req, 4)
                if i.kind in ('vmem', 'dma') and (sw & i.src): req = max(req, 5)
                if p.base() in TRANS and isvalu and b not in TRANS and (vw & (i.src | i.dst)): req = max(req, 1)
                if p.base() in TRANS and i.kind in ('mfma',) and (vw & i.src): req = max(req, 2)
                if ('exec', 0) in p.dst and (isvalu or i.kind == 'mfma'): req = max(req, 5)
                if ('vcc', 0) in p.dst and i.op in ('s_cbranch_vccz', 's_cbranch_vccnz'): req = max(req, 2)
            if p.kind == 'mfma':
                np_ = p.passes()
                D = p.dst
                if i.kind == 'mfma':
                    ab = regs_of(i.ops[1]) | regs_of(i.ops[2]); c = regs_of(i.ops[3])
                    if D & ab: req = max(req, {4: 8, 8: 12}[np_])
                    if D & c:
                        if c == D and i.passes() == np_: pass
                        else: req = max(req, {4: 6, 8: 10}[np_])
                    if (D & i.dst) and not (c == D): req = max(req, {4: 6, 8: 10}[np_])
                elif i.kind in ('valu', 'vmem', 'ds', 'dma'):
                    if D & (i.src | i.dst): req = max(req, {4: 8, 8: 12}[np_])
                    c = regs_of(p.ops[3])
                    if isvalu and (c & i.dst): req = max(req, {4: 3, 8: 7}[np_])
            if p.store_wide():
                data = regs_of(p.ops[0])
                if (i.dst & data) and i.kind in ('valu', 'mfma', 'ds', 'vmem'): req = max(req, 2)
            if p.kind == 'ds' and p.op.startswith('ds_write') and ('b128' in p.op or 'b96' in p.op):
                data = set().union(*[regs_of(o) for o in p.ops[1:]])
                if (i.dst & data) and isvalu: req = max(req, 2)
            if p.kind == 'salu' and ('m0', 0) in p.dst and i.kind == 'dma': req = max(req, 1)
            if req > dist: need = max(need, req - dist)
            dist += states(p)
            if dist > 24: break
        while need > 0:
            n = min(need, 16)
            nop = Ins('s_nop %d' % (n - 1)); out.append(nop); hist.append(nop); need -= n
        out.append(i); hist.append(i)
        if len(hist) > 40: hist = hist[-30:]
    return out

def finalize(asm):
    ins = insert_waits(asm.ins)
    ins = insert_hazards(ins)
    lines = []
    for i in ins:
        if i.kind == 'label': lines.append(i.text)
        else: lines.append('    ' + i.text)
    return '\n'.join(lines) + '\n', ins
```

```python
from common import *
import tables
import numpy as np

L_X  = 0
L_WK = 65536
L_WV = 94208
L_S  = 122880
L_TAB = 157696
LDS_BYTES = 163840
L_UB  = 0
L_RED = 16384
L_CX  = 49152
S_X, S_W, S_WS, S_U, S_WSB, S_DBG, S_PHI = 28, 32, 36, 40, 44, 48, 52
sRB, sH, sW_, sJ = 56, 57, 58, 59
sXO = 60
sWO = 67
sT0, sT1, sT2, sT3 = 74, 75, 76, 77
sL = 78
sNON = 80
sMASKA = 82
sMASKH = 84
sM0X = 86
sM0W = 87
sCH = 88
sTB, sCB = 89, 90
sCHN = 81+14
STAMP0 = 92

class K1:
    def __init__(self, stage=99, stamps=False):
        self.stage = stage; self.stamps = stamps; self.nst = 0
        self.a = Asm()
    def stamp(self, a, real=False):
        if not self.stamps: return
        k = self.nst; self.nst += 1
        a.e("s_memrealtime s[92:93]" if real else "s_memtime s[92:93]")
        a.e("s_waitcnt lgkmcnt(0)")
        a.e(f"v_writelane_b32 v239, s92, {k}")
    def stamp_out(self, a):
        if not self.stamps: return
        a.e(f"s_lshl_b32 s74, s2, 2"); a.e(f"s_add_u32 s74, s74, s{sW_}"); a.e("s_lshl_b32 s74, s74, 8"); a.e(f"s_add_u32 s74, s74, {WS_DBG}")
        a.e("v_lshlrev_b32 v11, 2, v0")
        a.e(f"buffer_store_dword v239, v11, s[{S_WS}:{S_WS+3}], s74 offen")
    def nonce_make_issue(self, a):
        a.e(f"v_mov_b32 v26, {WS_FLAG}")
        a.e(f"buffer_load_dword v25, v26, s[{S_WS}:{S_WS+3}], 0 offen sc0 sc1", tag='non0')
    def nonce_make_publish(self, a):
        a.wait_vm_tag('non0')
        a.e(f"s_or_b32 s74, s2, s{sW_}"); a.e("s_cmp_lg_u32 s74, 0"); a.e("s_cbranch_scc1 L_nonce_skip")
        a.e("v_add_u32 v25, 1, v25"); a.e("v_or_b32 v27, 0x80000000, v25"); a.e("v_mov_b32 v28, 0")
        a.e("s_mov_b64 exec, 1")
        a.e(f"buffer_store_dword v25, v26, s[{S_WS}:{S_WS+3}], 0 offen sc0 sc1", raw=True)
        a.e(f"buffer_store_dword v27, v28, s[{S_DBG}:{S_DBG+3}], 0 offen sc0 sc1", raw=True)
        a.e("s_mov_b64 exec, -1")
        a.label("L_nonce_skip")
    def nonce_get(self, a):
        a.wait_all_vm()
        a.e("v_mov_b32 v28, 0"); a.e("s_mov_b32 s74, 200000")
        a.label("L_nonce_poll")
        a.e(f"buffer_load_dword v27, v28, s[{S_DBG}:{S_DBG+3}], 0 offen sc0 sc1", raw=True)
        a.e("s_waitcnt vmcnt(0)", raw=True)
        a.e(f"v_readfirstlane_b32 s{sNON}, v27")
        a.e("s_sub_u32 s74, s74, 1"); a.e("s_cmp_eq_u32 s74, 0"); a.e("s_cbranch_scc1 L_nonce_done")
        a.e(f"s_cmp_eq_u32 s{sNON}, 0"); a.e("s_cbranch_scc1 L_nonce_poll")
        a.label("L_nonce_done")
    def flag_set(self, a, off_sreg):
        lab = f"L_fs{self.uid()}"
        a.e(f"s_cmp_lg_u32 s{sW_}, 0"); a.e(f"s_cbranch_scc1 {lab}")
        a.e(f"v_mov_b32 v27, s{sNON}"); a.e(f"v_mov_b32 v28, s{off_sreg}"); a.e("s_mov_b64 exec, 1")
        a.e(f"buffer_store_dword v27, v28, s[{S_WS}:{S_WS+3}], 0 offen sc0 sc1", raw=True)
        a.e("s_mov_b64 exec, -1")
        a.label(lab)
    def flag_wait(self, a, off_sreg, n):
        lab = f"L_fw{self.uid()}"
        a.wait_all_vm()
        a.e(f"s_cmp_lg_u32 s{sW_}, 0"); a.e(f"s_cbranch_scc1 {lab}_done")
        a.e(f"v_and_b32 v28, {n-1}, v0"); a.e(f"v_lshlrev_b32 v28, 2, v28"); a.e(f"v_add_u32 v28, s{off_sreg}, v28"); a.e("s_mov_b32 s74, 200000")
        a.label(lab)
        a.e(f"buffer_load_dword v27, v28, s[{S_WS}:{S_WS+3}], 0 offen sc0 sc1", raw=True)
        a.e("s_waitcnt vmcnt(0)", raw=True)
        a.e(f"v_cmp_ne_u32 vcc, s{sNON}, v27")
        a.e("s_sub_u32 s74, s74, 1"); a.e("s_cmp_eq_u32 s74, 0"); a.e(f"s_cbranch_scc1 {lab}_done")
        a.e(f"s_cbranch_vccnz {lab}")
        a.label(lab + "_done")
        a.e("s_barrier")
    def uid(self):
        self._uid = getattr(self, '_uid', 0) + 1
        return self._uid
    def q_phase(self, a):
        self.gemm(a, [(8, 32, 'T')])
        self.features(a, 32, 64, 72, 120, 240)
    def o_phase(self, a):
        a.e(f"s_lshl_b32 s74, s{sH}, 6"); a.e(f"s_add_u32 s74, s74, s{sW_}"); a.e("s_lshl_b32 s74, s74, 10"); a.e(f"s_add_u32 s74, s74, {WS_KVP}")
        for p in range(16):
            a.e(f"buffer_load_dwordx4 a[{160+4*p}:{163+4*p}], v10, s[{S_WS}:{S_WS+3}], s74 offen sc0 sc1")
            if p < 15: a.e("s_add_u32 s74, s74, 4096")
        for p in range(16):
            c1 = '0' if p == 0 else 'v[32:35]'; c2 = '0' if p == 0 else 'v[36:39]'
            a.e(f"v_mfma_f32_16x16x32_bf16 v[32:35], a[128:131], a[{160+4*p}:{163+4*p}], {c1}")
            a.e(f"v_mfma_f32_16x16x32_bf16 v[36:39], a[132:135], a[{160+4*p}:{163+4*p}], {c2}")
        for m in range(4): a.e(f"v_cvt_pk_bf16_f32 v{40+m}, v{32+2*m}, v{33+2*m}")
        a.e(f"s_lshl_b32 s74, s{sW_}, 10"); a.e(f"s_add_u32 s74, s74, {L_RED}"); a.e("v_add_u32 v11, s74, v10")
        a.e("ds_write_b128 v11, v[40:43]")
        a.wait_all_lds(); a.e("s_barrier")
        a.e(f"v_add_u32 v11, {L_RED}, v10")
        for f in range(4): a.e(f"ds_read_b128 v[{44+4*f}:{47+4*f}], v11 offset:{1024*f}")
        for f in range(4):
            a.e(f"v_mfma_f32_32x32x16_bf16 v[64:79], v[{44+4*f}:{47+4*f}], v[{240+4*f}:{243+4*f}], {'0' if f == 0 else 'v[64:79]'}")
        a.e("v_mov_b32 v12, v76"); a.e("v_mov_b32 v13, v76")
        a.e("v_permlane32_swap_b32 v12, v13")
        a.e("v_add_f32 v12, 0x358637bd, v12")
        a.e("v_rcp_f32 v12, v12")
        for i in range(8): a.e(f"v_pk_mul_f32 v[{64+2*i}:{65+2*i}], v[{64+2*i}:{65+2*i}], v[12:13] op_sel_hi:[1,0]")
        for i in range(12, 16): a.e(f"v_cndmask_b32 v{64+i}, 0, v{64+i}, s[{sMASKH}:{sMASKH+1}]")
        for m in range(8): a.e(f"v_cvt_pk_bf16_f32 v{80+m}, v{64+2*m}, v{65+2*m}")
        a.e(f"s_lshl_b32 s74, s{sRB}, 2"); a.e(f"s_add_u32 s74, s74, s{sW_}"); a.e("s_lshl_b32 s74, s74, 4"); a.e(f"s_add_u32 s74, s74, s{sH}")
        a.e("s_lshl_b32 s74, s74, 11"); a.e(f"s_add_u32 s74, s74, {WS_O}") if WS_O else None
        a.e(f"buffer_store_dwordx4 v[80:83], v10, s[{S_WS}:{S_WS+3}], s74 offen")
        a.e(f"buffer_store_dwordx4 v[84:87], v10, s[{S_WS}:{S_WS+3}], s74 offen offset:1024")
    def dma_x(self, g, rq, slot, tag):
        a = Asm()
        a.e(f"s_add_u32 s{sT0}, s{sXO+g}, {rq*7168}")
        a.e(f"s_add_u32 m0, s{sM0X}, {slot*4096 + rq*1024}")
        a.e(f"buffer_load_dwordx4 v{1 + (rq & 1)}, s[{S_X}:{S_X+3}], s{sT0} offen lds", tag=tag)
        return a.ins
    def dma_w(self, g, sec, ldsbase, tag):
        a = Asm()
        a.e(f"s_add_u32 s{sT0}, s{sWO+g}, {sec*896}")
        a.e(f"s_add_u32 m0, s{sM0W}, {ldsbase + g*4096}")
        a.e(f"buffer_load_dwordx4 v3, s[{S_W}:{S_W+3}], s{sT0} offen lds", tag=tag)
        return a.ins
    def prologue(self):
        a = self.a
        a.e("s_cmp_ge_u32 s2, 256"); a.e("s_cbranch_scc1 L_k1_end")
        a.e("s_load_dwordx4 s[4:7], s[0:1], 0")
        a.e("s_load_dwordx2 s[8:9], s[0:1], 16")
        a.e("s_load_dwordx8 s[12:19], s[0:1], 32")
        a.e("s_load_dwordx4 s[20:23], s[0:1], 64")
        a.e("s_load_dwordx4 s[24:27], s[0:1], 96")
        a.e("s_getpc_b64 s[10:11]")
        a.label("L_pc")
        a.e("s_and_b32 s56, s2, 7"); a.e("s_lshr_b32 s59, s2, 3")
        a.e("s_lshr_b32 s74, s56, 1"); a.e("s_lshl_b32 s74, s74, 2"); a.e("s_and_b32 s75, s59, 3"); a.e(f"s_add_u32 s{sRB}, s74, s75")
        a.e("s_and_b32 s74, s2, 1"); a.e("s_lshl_b32 s74, s74, 3"); a.e("s_lshr_b32 s76, s59, 2"); a.e(f"s_add_u32 s{sH}, s74, s76")
        a.e("s_lshl_b32 s75, s75, 1"); a.e("s_add_u32 s75, s75, s76")
        a.e("s_cmp_ge_u32 s75, 7"); a.e("s_cselect_b32 s76, 7, 0"); a.e("s_sub_u32 s75, s75, s76")
        a.e("v_lshrrev_b32 v11, 6, v0"); a.e("v_and_b32 v0, 63, v0")
        a.e(f"v_readfirstlane_b32 s{sW_}, v11")
        a.e("v_lshlrev_b32 v12, 13, v11"); a.e("v_lshl_add_u32 v12, v0, 7, v12")
        a.e("v_cmp_gt_u32 vcc, L_k1_code_end-L_pc, v12")
        a.e("s_and_saveexec_b64 s[92:93], vcc")
        a.e("global_load_dword v13, v12, s[10:11]", tag='pf')
        a.e("s_mov_b64 exec, s[92:93]")
        a.e(f"s_mul_i32 s76, s{sRB}, 114688"); a.e(f"s_mul_i32 s77, s{sW_}, 28672"); a.e("s_add_u32 s76, s76, s77")
        for g in range(7):
            a.e(f"s_lshl_b32 s77, s75, 7"); a.e(f"s_add_u32 s{sXO+g}, s76, s77")
            a.e(f"s_mul_i32 s{sWO+g}, s75, 172032")
            if g < 6:
                a.e("s_add_u32 s75, s75, 1"); a.e("s_cmp_eq_u32 s75, 7"); a.e("s_cselect_b32 s75, 0, s75")
        a.e(f"s_lshl_b32 s{sM0X}, s{sW_}, 14")
        a.e(f"s_lshl_b32 s{sM0W}, s{sW_}, 10")
        a.e("v_lshrrev_b32 v11, 3, v0"); a.e("v_mul_u32_u24 v11, 896, v11")
        a.e("v_and_b32 v12, 7, v0"); a.e("v_lshrrev_b32 v14, 4, v0")
        a.e("v_xor_b32 v15, v12, v14"); a.e("v_lshl_add_u32 v1, v15, 4, v11")
        a.e("v_xor_b32 v15, 4, v15"); a.e("v_lshl_add_u32 v2, v15, 4, v11")
        a.e("v_lshrrev_b32 v11, 2, v0"); a.e(f"s_lshl_b32 s74, s{sW_}, 4"); a.e("v_add_u32 v11, s74, v11"); a.e("v_mul_u32_u24 v11, 2688, v11")
        a.e("v_and_b32 v12, 3, v0"); a.e("v_lshlrev_b32 v14, 4, v12"); a.e("v_min_u32 v14, 40, v14")
        a.e(f"s_mul_i32 s74, s{sH}, 56"); a.e("v_add3_u32 v3, v11, v14, s74")
        a.e("v_and_b32 v11, 31, v0"); a.e("v_lshrrev_b32 v12, 5, v0"); a.e("v_bfe_u32 v14, v0, 1, 3"); a.e("v_xor_b32 v12, v12, v14")
        a.e("v_lshlrev_b32 v11, 7, v11"); a.e(f"v_add_u32 v11, s{sM0X}, v11")
        for j in range(4):
            a.e(f"v_xor_b32 v14, {2*j}, v12"); a.e(f"v_lshl_add_u32 v{4+j}, v14, 4, v11")
        a.e("v_lshrrev_b32 v11, 5, v0"); a.e("v_bfe_u32 v12, v0, 2, 2"); a.e("v_lshl_add_u32 v11, v11, 3, v12"); a.e("v_lshlrev_b32 v11, 6, v11")
        a.e("v_bfe_u32 v12, v0, 4, 1"); a.e("v_lshl_add_u32 v11, v12, 5, v11"); a.e("v_and_b32 v12, 3, v0"); a.e("v_lshl_add_u32 v11, v12, 3, v11")
        a.e(f"v_add_u32 v8, {L_WK}, v11"); a.e(f"v_add_u32 v9, {L_WV}, v11")
        a.e("v_lshlrev_b32 v10, 4, v0")
        a.e(f"s_mov_b32 s{sL}, 0x3fb8aa3b"); a.e(f"s_mov_b32 s{sL+1}, 0x3fb8aa3b")
        a.e("v_and_b32 v11, 31, v0"); a.e(f"v_cmp_eq_u32 s[{sMASKA}:{sMASKA+1}], 24, v11")
        a.e(f"s_mov_b32 s{sMASKH}, 0"); a.e(f"s_mov_b32 s{sMASKH+1}, -1")
        a.e("s_waitcnt lgkmcnt(0)")
        srd(a, S_X, 'x', 4); srd(a, S_W, 'wqkv', 6); srd(a, S_WS, 'ws', 26); srd(a, S_U, 'u', 12); srd(a, S_DBG, 'dbg', 24); srd(a, S_PHI, 'wphi', 8)
        a.e("s_add_u32 s10, s10, L_tab-L_pc"); a.e("s_addc_u32 s11, s11, 0")
        a.e("global_load_dwordx4 a[112:115], v10, s[10:11]", tag='tab'); a.e("global_load_dwordx4 a[116:119], v10, s[10:11] offset:1024", tag='tab')
        a.e("global_load_dwordx4 a[128:131], v10, s[10:11] offset:2048", tag='tab'); a.e("global_load_dwordx4 a[132:135], v10, s[10:11] offset:3072", tag='tab')
        a.e(f"s_mul_i32 s74, s{sH}, 1568"); a.e(f"s_add_u32 m0, s{sM0X}, {3*4096+2048}")
        a.e(f"buffer_load_dwordx4 v10, s[{S_PHI}:{S_PHI+3}], s74 offen lds", tag='phi')
        a.e(f"s_add_u32 s74, s74, 1024"); a.e(f"s_add_u32 m0, s{sM0X}, {3*4096+3072}")
        a.e(f"buffer_load_dwordx4 v10, s[{S_PHI}:{S_PHI+3}], s74 offen lds", tag='phi')
    def read_wphi(self, a):
        a.wait_vm_tag('phi')
        a.e("v_and_b32 v11, 3, v0"); a.e("v_lshlrev_b32 v11, 2, v11"); a.e("v_bfe_u32 v12, v0, 4, 1"); a.e("v_lshl_add_u32 v11, v12, 4, v11")
        a.e("v_min_u32 v11, 24, v11")
        a.e("v_lshrrev_b32 v12, 5, v0"); a.e("v_bfe_u32 v14, v0, 2, 2"); a.e("v_lshl_add_u32 v12, v12, 2, v14")
        a.e("v_mul_u32_u24 v12, 56, v12"); a.e("v_lshl_add_u32 v11, v11, 1, v12")
        a.e(f"v_add_u32 v11, s{sM0X}, v11")
        base = 3*4096 + 2048
        a.e(f"ds_read_b64_tr_b16 v[16:17], v11 offset:{base}")
        a.e(f"ds_read_b64_tr_b16 v[18:19], v11 offset:{base + 8*56}")
        a.e(f"ds_read_b64_tr_b16 v[20:21], v11 offset:{base + 16*56}")
        a.e(f"ds_read_b64_tr_b16 v[22:23], v11 offset:{base + 20*56}")
        a.e(f"v_cndmask_b32 v22, 0, v22, s[{sMASKH}:{sMASKH+1}]"); a.e(f"v_cndmask_b32 v23, 0, v23, s[{sMASKH}:{sMASKH+1}]")
        for i in range(8): a.e(f"v_accvgpr_write_b32 a{120+i}, v{16+i}")
    def read_x(self, a, gs, slots):
        for g, slot in zip(gs, slots):
            for j in range(4):
                ks = 4*g + j
                a.e(f"ds_read_b128 a[{4*ks}:{4*ks+3}], v{4+j} offset:{slot*4096}", tag='xr')
    def gemm(self, a, secs):
        nb = 4
        def bufreg(k, i): return 64 + (k % nb) * 8 + 4 * i
        def issue(k):
            for i, (vr, D, o) in enumerate(secs):
                b = bufreg(k, i)
                a.e(f"ds_read_b64_tr_b16 v[{b}:{b+1}], v{vr} offset:{1024*k}")
                a.e(f"ds_read_b64_tr_b16 v[{b+2}:{b+3}], v{vr} offset:{1024*k+256}")
        for k in range(3): issue(k)
        for k in range(28):
            if k + 3 < 28: issue(k + 3)
            for i, (vr, D, o) in enumerate(secs):
                b = bufreg(k, i); c = '0' if k == 0 else f"v[{D}:{D+15}]"
                if o == 'T': a.e(f"v_mfma_f32_32x32x16_bf16 v[{D}:{D+15}], v[{b}:{b+3}], a[{4*k}:{4*k+3}], {c}")
                else:        a.e(f"v_mfma_f32_32x32x16_bf16 v[{D}:{D+15}], a[{4*k}:{4*k+3}], v[{b}:{b+3}], {c}")
    def features(self, a, D, F, P, E, FO, fill=None):
        for m in range(8): a.e(f"v_cvt_pk_bf16_f32 v{F+m}, v{D+2*m}, v{D+2*m+1}")
        a.e(f"v_mfma_f32_32x32x16_bf16 v[{P}:{P+15}], a[120:123], v[{F}:{F+3}], 0")
        a.e(f"v_mfma_f32_32x32x16_bf16 v[{P}:{P+15}], a[124:127], v[{F+4}:{F+7}], v[{P}:{P+15}]")
        if fill is not None: a.extend(fill)
        mx, mn, t0, t1 = 12, 14, 16, 18
        a.e(f"v_max3_f32 v{mx}, v{P}, v{P+1}, v{P+2}"); a.e(f"v_min3_f32 v{mn}, v{P}, v{P+1}, v{P+2}")
        for i in range(3, 15, 2):
            a.e(f"v_max3_f32 v{mx}, v{mx}, v{P+i}, v{P+i+1}"); a.e(f"v_min3_f32 v{mn}, v{mn}, v{P+i}, v{P+i+1}")
        a.e(f"v_max_f32 v{mx}, v{mx}, v{P+15}"); a.e(f"v_min_f32 v{mn}, v{mn}, v{P+15}")
        a.e(f"v_mov_b32 v{t0}, v{mx}"); a.e(f"v_mov_b32 v{t1}, v{mn}")
        a.e(f"v_permlane32_swap_b32 v{mx}, v{t0}"); a.e(f"v_permlane32_swap_b32 v{mn}, v{t1}")
        a.e(f"v_max_f32 v{mx}, v{mx}, v{t0}"); a.e(f"v_min_f32 v{mn}, v{mn}, v{t1}")
        a.e(f"v_mul_f32 v{mx}, s{sL}, v{mx}"); a.e(f"v_mul_f32 v{mn}, s{sL}, v{mn}")
        Ep, En = E, E + 16
        for i in range(8):
            a.e(f"v_pk_fma_f32 v[{Ep+2*i}:{Ep+2*i+1}], v[{P+2*i}:{P+2*i+1}], s[{sL}:{sL+1}], v[{mx}:{mx+1}] op_sel_hi:[1,1,0] neg_lo:[0,0,1] neg_hi:[0,0,1]")
            a.e(f"v_pk_fma_f32 v[{En+2*i}:{En+2*i+1}], v[{P+2*i}:{P+2*i+1}], s[{sL}:{sL+1}], v[{mn}:{mn+1}] op_sel_hi:[1,1,0] neg_lo:[1,0,0] neg_hi:[1,0,0]")
        for i in range(16):
            a.e(f"v_exp_f32 v{Ep+i}, v{Ep+i}"); a.e(f"v_exp_f32 v{En+i}, v{En+i}")
        for i in range(12, 16):
            a.e(f"v_cndmask_b32 v{Ep+i}, v{Ep+i}, 0, s[{sMASKH}:{sMASKH+1}]"); a.e(f"v_cndmask_b32 v{En+i}, v{En+i}, 0, s[{sMASKH}:{sMASKH+1}]")
        sp, sn = 20, 22
        a.e(f"v_pk_add_f32 v[{sp}:{sp+1}], v[{Ep}:{Ep+1}], v[{Ep+2}:{Ep+3}]"); a.e(f"v_pk_add_f32 v[{sn}:{sn+1}], v[{En}:{En+1}], v[{En+2}:{En+3}]")
        for i in range(2, 8):
            a.e(f"v_pk_add_f32 v[{sp}:{sp+1}], v[{sp}:{sp+1}], v[{Ep+2*i}:{Ep+2*i+1}]"); a.e(f"v_pk_add_f32 v[{sn}:{sn+1}], v[{sn}:{sn+1}], v[{En+2*i}:{En+2*i+1}]")
        a.e(f"v_add_f32 v{sp}, v{sp}, v{sp+1}"); a.e(f"v_add_f32 v{sn}, v{sn}, v{sn+1}")
        a.e(f"v_mov_b32 v{t0}, v{sp}"); a.e(f"v_mov_b32 v{t1}, v{sn}")
        a.e(f"v_permlane32_swap_b32 v{sp}, v{t0}"); a.e(f"v_permlane32_swap_b32 v{sn}, v{t1}")
        a.e(f"v_add_f32 v{sp}, v{sp}, v{t0}"); a.e(f"v_add_f32 v{sn}, v{sn}, v{t1}")
        a.e(f"v_rcp_f32 v{sp}, v{sp}"); a.e(f"v_rcp_f32 v{sn}, v{sn}")
        for i in range(8):
            a.e(f"v_pk_mul_f32 v[{Ep+2*i}:{Ep+2*i+1}], v[{Ep+2*i}:{Ep+2*i+1}], v[{sp}:{sp+1}] op_sel_hi:[1,0]")
            a.e(f"v_pk_mul_f32 v[{En+2*i}:{En+2*i+1}], v[{En+2*i}:{En+2*i+1}], v[{sn}:{sn+1}] op_sel_hi:[1,0]")
        for m in range(8):
            a.e(f"v_cvt_pk_bf16_f32 v{FO+m}, v{Ep+2*m}, v{Ep+2*m+1}"); a.e(f"v_cvt_pk_bf16_f32 v{FO+8+m}, v{En+2*m}, v{En+2*m+1}")
    def kv_partial(self, a):
        Dk, Dv = 32, 48
        V = 96
        fill = Asm()
        for m in range(8): fill.e(f"v_cvt_pk_bf16_f32 v{V+m}, v{Dv+2*m}, v{Dv+2*m+1}")
        fill.e("v_mov_b32 v24, 0x3f803f80")
        for m in range(8): fill.e(f"v_cndmask_b32 v{V+m}, v{V+m}, v24, s[{sMASKA}:{sMASKA+1}]")
        FO = 104
        self.features(a, Dk, 64, 72, 120, FO, fill)
        a.e(f"v_mfma_f32_32x32x16_bf16 v[32:47], v[{FO}:{FO+3}], a[112:115], 0")
        a.e(f"v_mfma_f32_32x32x16_bf16 v[48:63], v[{FO+8}:{FO+11}], a[112:115], 0")
        a.e(f"v_mfma_f32_32x32x16_bf16 v[32:47], v[{FO+4}:{FO+7}], a[116:119], v[32:47]")
        a.e(f"v_mfma_f32_32x32x16_bf16 v[48:63], v[{FO+12}:{FO+15}], a[116:119], v[48:63]")
        G = 64
        for m in range(8): a.e(f"v_cvt_pk_bf16_f32 v{G+m}, v{32+2*m}, v{33+2*m}")
        for m in range(8): a.e(f"v_cvt_pk_bf16_f32 v{G+8+m}, v{48+2*m}, v{49+2*m}")
        a.e(f"v_mfma_f32_32x32x16_bf16 v[120:135], v[{G}:{G+3}], v[{V}:{V+3}], 0")
        a.e(f"v_mfma_f32_32x32x16_bf16 v[136:151], v[{G+8}:{G+11}], v[{V}:{V+3}], 0")
        a.e(f"v_mfma_f32_32x32x16_bf16 v[120:135], v[{G+4}:{G+7}], v[{V+4}:{V+7}], v[120:135]")
        a.e(f"v_mfma_f32_32x32x16_bf16 v[136:151], v[{G+12}:{G+15}], v[{V+4}:{V+7}], v[136:151]")
        a.e(f"s_lshl_b32 s74, s{sW_}, 11"); a.e(f"s_add_u32 s74, s74, {L_RED}"); a.e("v_add_u32 v11, s74, v10")
        for f in range(4):
            for hf in range(2):
                r = 120 + 8*f + 4*hf
                a.e(f"ds_write_b128 v11, v[{r}:{r+3}] offset:{f*8192 + hf*1024}")
        a.wait_all_lds(); a.e("s_barrier")
        a.e(f"s_lshl_b32 s74, s{sW_}, 13"); a.e(f"s_add_u32 s74, s74, {L_RED}"); a.e("v_add_u32 v11, s74, v10")
        for w in range(4):
            for hf in range(2):
                r = 32 + 8*w + 4*hf
                a.e(f"ds_read_b128 v[{r}:{r+3}], v11 offset:{w*2048 + hf*1024}")
        for i in range(4):
            a.e(f"v_pk_add_f32 v[{32+2*i}:{33+2*i}], v[{32+2*i}:{33+2*i}], v[{40+2*i}:{41+2*i}]")
            a.e(f"v_pk_add_f32 v[{48+2*i}:{49+2*i}], v[{48+2*i}:{49+2*i}], v[{56+2*i}:{57+2*i}]")
        for i in range(4): a.e(f"v_pk_add_f32 v[{32+2*i}:{33+2*i}], v[{32+2*i}:{33+2*i}], v[{48+2*i}:{49+2*i}]")
        for m in range(4): a.e(f"v_cvt_pk_bf16_f32 v{40+m}, v{32+2*m}, v{33+2*m}")
        a.e(f"s_lshl_b32 s74, s{sH}, 4"); a.e(f"s_add_u32 s74, s74, s{sRB}"); a.e("s_lshl_b32 s74, s74, 2"); a.e(f"s_add_u32 s74, s74, s{sW_}")
        a.e("s_lshl_b32 s74, s74, 10"); a.e(f"s_add_u32 s74, s74, {WS_KVP}")
        a.e(f"buffer_store_dwordx4 v[40:43], v10, s[{S_WS}:{S_WS+3}], s74 offen sc0 sc1", tag='kvp')

    def b_ids(self, a):
        a.e(f"s_min_u32 s{sCH}, s2, 223")
        a.e(f"s_and_b32 s74, s{sCH}, 7"); a.e("s_lshl_b32 s74, s74, 2"); a.e(f"s_bfe_u32 s75, s{sCH}, 0x20003"); a.e(f"s_add_u32 s{sTB}, s74, s75")
        a.e(f"s_lshr_b32 s{sCB}, s{sCH}, 5")
        a.e(f"s_mov_b32 s{S_WSB}, s{S_WS}"); a.e(f"s_mov_b32 s{S_WSB+1}, s{S_WS+1}")
        a.e("s_cmp_lt_u32 s2, 224"); a.e(f"s_cselect_b32 s{S_WSB+2}, {SZ['ws']}, 0"); a.e(f"s_mov_b32 s{S_WSB+3}, 0x20000")
    def b_loads(self, a):
        a.e(f"s_lshr_b32 s74, s{sW_}, 1"); a.e(f"s_lshl_b32 s75, s{sCH}, 1"); a.e("s_add_u32 s75, s75, s74")
        a.e(f"s_mov_b32 s{sCHN}, s75")
        a.e("s_lshl_b32 s76, s75, 9"); a.e(f"s_and_b32 s77, s{sW_}, 1"); a.e("s_lshl_b32 s77, s77, 8"); a.e("s_add_u32 s76, s76, s77")
        a.e("v_lshl_add_u32 v11, v0, 2, s76")
        a.e("global_load_dword v32, v11, s[14:15]", tag='par'); a.e("global_load_dword v33, v11, s[16:17]", tag='par')
        a.e("global_load_dword v34, v11, s[18:19]", tag='par'); a.e("global_load_dword v35, v11, s[20:21]", tag='par')
        a.e(f"s_lshl_b32 s76, s{sCH}, 2"); a.e("s_add_u32 s22, s22, s76"); a.e("s_addc_u32 s23, s23, 0")
        a.e("s_load_dword s91, s[22:23], 0", tag='ldt')
        a.e("v_lshrrev_b32 v11, 3, v0"); a.e("v_mul_u32_u24 v11, 896, v11"); a.e("v_and_b32 v12, 7, v0"); a.e("v_lshl_add_u32 v11, v12, 4, v11")
        a.e(f"s_lshl_b32 s74, s{sTB}, 6"); a.e(f"s_lshl_b32 s75, s{sW_}, 4"); a.e("s_add_u32 s74, s74, s75"); a.e("s_mul_i32 s74, s74, 896")
        a.e(f"s_lshl_b32 s75, s{sCB}, 7"); a.e("s_add_u32 s74, s74, s75")
        for i in range(2):
            a.e(f"s_add_u32 m0, s{sM0X}, {3*4096 + i*1024}")
            a.e(f"buffer_load_dwordx4 v11, s[{S_U}:{S_U+3}], s74 offen lds", tag='ut')
            if i == 0: a.e("s_add_u32 s74, s74, 7168")
        a.e(f"s_and_b32 s74, s{sW_}, 1"); a.e("s_lshl_b32 s74, s74, 11"); a.e("s_add_u32 s74, s74, 4096"); a.e("v_lshl_add_u32 v11, v0, 5, s74")
        for i in range(3): a.e(f"global_load_dwordx4 v[{192+4*i}:{195+4*i}], v11, s[10:11] offset:{16*i}", tag='gt')
        for i in range(4): a.e(f"v_mov_b32 v{16+i}, 0")
        a.e(f"s_mul_i32 s74, s{sW_}, 1536"); a.e(f"s_add_u32 s74, s74, {L_TAB}"); a.e("v_add_u32 v11, s74, v10")
        a.e("ds_write_b128 v11, v[16:19]"); a.e("ds_write_b128 v11, v[16:19] offset:512")
    def ut_phase(self, a):
        a.e("v_lshrrev_b32 v11, 5, v0"); a.e("v_lshlrev_b32 v11, 14, v11")
        a.e("v_bfe_u32 v12, v0, 4, 1"); a.e("v_bfe_u32 v14, v0, 2, 2"); a.e("v_lshl_add_u32 v12, v12, 3, v14"); a.e("v_lshl_add_u32 v11, v12, 7, v11")
        a.e("v_and_b32 v12, 3, v0"); a.e("v_lshl_add_u32 v11, v12, 3, v11"); a.e(f"s_lshl_b32 s74, s{sW_}, 5"); a.e("s_add_u32 s74, s74, 12288"); a.e("v_add_u32 v11, s74, v11")
        for i in range(2):
            for be in range(2):
                a.e(f"ds_read_b64_tr_b16 v[{16+4*i+2*be}:{17+4*i+2*be}], v11 offset:{i*32768 + be*512}")
        a.e("v_and_b32 v12, 15, v0"); a.e("v_lshlrev_b32 v12, 12, v12"); a.e("v_lshrrev_b32 v14, 4, v0"); a.e("v_lshl_add_u32 v12, v14, 4, v12")
        a.e(f"s_lshl_b32 s74, s{sCB}, 2"); a.e(f"s_add_u32 s74, s74, s{sW_}"); a.e("s_lshl_b32 s74, s74, 16"); a.e(f"s_lshl_b32 s75, s{sTB}, 7"); a.e("s_add_u32 s74, s74, s75")
        a.e(f"s_add_u32 s74, s74, {WS_UT}")
        a.e(f"buffer_store_dwordx4 v[16:19], v12, s[{S_WSB}:{S_WSB+3}], s74 offen sc0 sc1", tag='uts')
        a.e(f"buffer_store_dwordx4 v[20:23], v12, s[{S_WSB}:{S_WSB+3}], s74 offen offset:64 sc0 sc1", tag='uts')
    def cmul(self, a, d, z, m):
        a.e(f"v_pk_mul_f32 v[{d}:{d+1}], v[{z}:{z+1}], v[{m}:{m+1}] op_sel_hi:[1,0]")
        a.e(f"v_pk_fma_f32 v[{d}:{d+1}], v[{z}:{z+1}], v[{m}:{m+1}], v[{d}:{d+1}] op_sel:[1,1,0] op_sel_hi:[0,1,1] neg_lo:[1,0,0]")
    def kgen_setup(self, a):
        a.e(f"s_lshr_b32 s74, s{sW_}, 1"); a.e("s_lshl_b32 s74, s74, 4"); a.e("s_lshr_b32 s91, s91, s74"); a.e("s_lshl_b32 s91, s91, 16")
        a.e(f"v_mov_b32 v36, s91"); a.e(f"v_mul_f32 v36, s{sL}, v36"); a.e("v_exp_f32 v36, v36")
        a.e("v_cvt_pk_bf16_f32 v36, v36, v36"); a.e("v_lshlrev_b32 v36, 16, v36")
        a.e(f"s_mul_i32 s74, s{sW_}, 8704"); a.e(f"s_add_u32 s74, s74, {L_S}")
        a.e("v_lshl_add_u32 v30, v0, 2, s74")
        a.e("v_and_b32 v11, 15, v0"); a.e("v_mul_u32_u24 v11, 272, v11"); a.e("v_lshrrev_b32 v12, 4, v0"); a.e("v_lshl_add_u32 v11, v12, 4, v11"); a.e("v_add_u32 v31, s74, v11")
        a.e("s_mov_b32 s81, 0xffff0000")
    def kgen_round(self, a, rho):
        E1, E8, E128, E16, E256, C = 40, 42, 44, 46, 48, 50
        R0, R1, S2A, S2B, S3, S4 = 52, 68, 84, 92, 100, 116
        tmpi = [0]
        def put(z, row, neg=False):
            t = 142 + (tmpi[0] & 3); tmpi[0] += 1
            a.e(f"v_cvt_pk_bf16_f32 v{t}, v{z}, {'-' if neg else ''}v{z+1}")
            a.e(f"ds_write_b32 v30, v{t} offset:{row*272}")
        def unpack(dst, src):
            a.e(f"v_lshlrev_b32 v{dst}, 16, v{src}" if rho == 0 else f"v_and_b32 v{dst}, s81, v{src}")
        unpack(37, 32); unpack(38, 33); unpack(C, 34); unpack(C+1, 35)
        a.e(f"v_mul_f32 v37, s{sL}, v37"); a.e("v_exp_f32 v37, v37"); a.e("v_mul_f32 v38, v36, v38")
        a.e("v_cvt_pk_bf16_f32 v37, v37, v37"); a.e("v_mul_f32 v38, 0.15915494, v38"); a.e("v_lshlrev_b32 v37, 16, v37")
        a.e("v_mul_f32 v37, v36, v37"); a.e(f"v_mul_f32 v{C}, v36, v{C}"); a.e(f"v_mul_f32 v{C+1}, v36, v{C+1}")
        a.e(f"v_mul_f32 v37, s{sL}, v37"); a.e(f"v_add_f32 v{C}, v{C}, v{C}"); a.e(f"v_add_f32 v{C+1}, v{C+1}, v{C+1}")
        for (E, mul) in ((E1, None), (E8, '0x41000000'), (E128, '0x43000000')):
            if mul is None:
                a.e("v_exp_f32 v138, -v37"); a.e("v_fract_f32 v139, v38")
            else:
                a.e(f"v_mul_f32 v138, {mul}, v37"); a.e(f"v_mul_f32 v139, {mul}, v38"); a.e("v_exp_f32 v138, -v138"); a.e("v_fract_f32 v139, v139")
            a.e(f"v_cos_f32 v{E}, v139"); a.e(f"v_sin_f32 v{E+1}, v139")
            a.e(f"v_pk_mul_f32 v[{E}:{E+1}], v[{E}:{E+1}], v[138:139] op_sel_hi:[1,0]")
        self.cmul(a, E16, E8, E8); self.cmul(a, E256, E128, E128)
        a.e("v_mov_b32 v142, 0x3f80"); a.e("ds_write_b32 v30, v142 offset:0"); tmpi[0] = 1
        put(E8, 1, True); put(E16, 2, True)
        ev, od = E16, E8; evn, odn = 134, 136
        alt = {134: 138, 138: 134, 136: 140, 140: 136}
        for j in range(3, 16):
            if j & 1:
                self.cmul(a, odn, od, E16); put(odn, j, True); od = odn; odn = alt[odn]
            else:
                self.cmul(a, evn, ev, E16); put(evn, j, True); ev = evn; evn = alt[evn]
        RB = 16
        def read_frags(dst, rowbase):
            for ks in range(4): a.e(f"ds_read_b128 v[{dst+4*ks}:{dst+4*ks+3}], v31 offset:{rowbase*272 + 64*ks}")
        def mfmas(t):
            for ks in range(4):
                c = '0' if (rho == 0 and ks == 0) else f"v[{146+4*t}:{149+4*t}]"
                a.e(f"v_mfma_f32_16x16x32_bf16 v[{146+4*t}:{149+4*t}], v[{176+4*ks}:{179+4*ks}], v[{160+4*ks}:{163+4*ks}], {c}")
        a.e(f"v_mov_b32 v{R0}, v{C}"); a.e(f"v_mov_b32 v{R0+1}, v{C+1}")
        put(R0, RB + 0)
        for r in range(1, 8):
            self.cmul(a, R0+2*r, R0+2*(r-1), E1); put(R0+2*r, RB + r)
        for r in range(8):
            self.cmul(a, R1+2*r, R0+2*r, E128); put(R1+2*r, RB + 8 + r)
        read_frags(160, 0); read_frags(176, RB)
        for r in range(4): self.cmul(a, S2A+2*r, R1+4*r, E128)
        for r in range(4): self.cmul(a, S2B+2*r, S2A+2*r, E128)
        self.cmul(a, S3, S2B, E128); self.cmul(a, S3+2, S2B+4, E128)
        for q in range(1, 4):
            self.cmul(a, S3+4*q, S3+4*(q-1), E128); self.cmul(a, S3+4*q+2, S3+4*(q-1)+2, E128)
        mfmas(0)
        for r in range(4): put(S2A+2*r, RB + r)
        for r in range(4): put(S2B+2*r, RB + 4 + r)
        for q in range(8): put(S3+2*q, RB + 8 + q)
        read_frags(176, RB)
        self.cmul(a, S4, S3+12, E128); self.cmul(a, S4+2, S4, E128)
        for q in range(2, 9): self.cmul(a, S4+2*q, S4+2*(q-2), E256)
        mfmas(1)
        for q in range(9): put(S4+2*q, RB + q)
        read_frags(176, RB)
        mfmas(2)
    def kgen_finish(self, a):
        a.e(f"s_lshr_b32 s74, s{sW_}, 1"); a.e("s_mul_i32 s74, s74, 2816"); a.e(f"s_add_u32 s74, s74, {L_TAB}")
        a.e("v_and_b32 v11, 15, v0"); a.e("v_lshrrev_b32 v12, 4, v0")
        a.e("v_and_b32 v14, 1, v12"); a.e("v_lshlrev_b32 v14, 4, v14"); a.e("v_lshrrev_b32 v15, 1, v12"); a.e("v_lshl_add_u32 v14, v15, 9, v14")
        a.e("v_lshl_add_u32 v14, v11, 5, v14"); a.e("v_add_u32 v16, s74, v14")
        a.e("v_lshlrev_b32 v14, 8, v12"); a.e("v_add_u32 v14, 1024, v14")
        a.e("v_lshlrev_b32 v15, 4, v11"); a.e("v_lshlrev_b32 v17, 3, v11"); a.e(f"v_cndmask_b32 v15, v15, v17, s[{sMASKH}:{sMASKH+1}]")
        a.e("v_add3_u32 v17, v14, v15, s74")
        a.e("v_mov_b32 v14, 8"); a.e("v_mov_b32 v15, 128"); a.e(f"v_cndmask_b32 v14, v14, v15, s[{sMASKH}:{sMASKH+1}]"); a.e("v_add_u32 v18, v17, v14")
        a.e("v_lshlrev_b32 v14, 8, v12"); a.e("v_lshl_add_u32 v14, v11, 2, v14"); a.e("v_add_u32 v14, 2048, v14"); a.e("v_add_u32 v19, s74, v14")
        for r in range(4): a.e(f"ds_add_f32 v16, v{146+r} offset:{4*r}")
        a.e("ds_add_f32 v17, v150"); a.e("ds_add_f32 v17, v151 offset:4"); a.e("ds_add_f32 v18, v152"); a.e("ds_add_f32 v18, v153 offset:4")
        a.e("s_mov_b32 exec_hi, 0xffff"); a.e("ds_add_f32 v19, v154"); a.e("s_mov_b32 exec_hi, 0")
        for r in range(1, 4): a.e(f"ds_add_f32 v19, v{154+r} offset:{64*r}")
        a.e("s_mov_b64 exec, -1")
    def expand(self, a):
        a.e(f"s_lshr_b32 s74, s{sW_}, 1"); a.e("s_mul_i32 s75, s74, 2816"); a.e(f"s_add_u32 s75, s75, {L_TAB}")
        for e in range(19):
            a.e(f"v_add_u32_sdwa v{32+e}, s75, v{192 + e//2} dst_sel:DWORD dst_unused:UNUSED_PAD src0_sel:DWORD src1_sel:WORD_{e&1}")
        for e in range(19): a.e(f"ds_read_b32 v{52+e}, v{32+e}")
        a.e(f"s_mul_i32 s74, s74, 16640"); a.e(f"s_and_b32 s75, s{sW_}, 1"); a.e("s_lshl_b32 s75, s75, 11"); a.e("s_add_u32 s74, s74, s75"); a.e(f"s_add_u32 s74, s74, {L_S}")
        a.e("v_lshl_add_u32 v11, v0, 5, s74")
        for sg in range(4):
            for i in range(8): a.e(f"v_cvt_pk_bf16_f32 v{72+8*sg+i}, v{52+sg+2*i}, v{53+sg+2*i}")
            a.e(f"ds_write_b128 v11, v[{72+8*sg}:{75+8*sg}] offset:{sg*4160}")
            a.e(f"ds_write_b128 v11, v[{76+8*sg}:{79+8*sg}] offset:{sg*4160+16}")
        for i in range(4): a.e(f"v_mov_b32 v{16+i}, 0")
        a.e(f"s_lshr_b32 s74, s{sW_}, 1"); a.e("s_mul_i32 s74, s74, 16640"); a.e(f"s_add_u32 s74, s74, {L_S + 4096}")
        a.e("v_bfe_u32 v12, v0, 2, 2"); a.e("v_mul_u32_u24 v12, 4160, v12"); a.e("v_and_b32 v14, 3, v0"); a.e("v_lshl_add_u32 v12, v14, 4, v12"); a.e("v_add_u32 v12, s74, v12")
        a.e("ds_write_b128 v12, v[16:19]")
    def conv_load_u(self, a):
        a.e(f"s_lshl_b32 s74, s{sCHN}, 12"); a.e(f"s_and_b32 s75, s{sW_}, 1"); a.e("s_lshl_b32 s75, s75, 11"); a.e("s_add_u32 s74, s74, s75"); a.e(f"s_add_u32 s74, s74, {WS_UT}")
        a.e(f"buffer_load_dwordx4 v[16:19], v10, s[{S_WS}:{S_WS+3}], s74 offen sc0 sc1")
        a.e(f"buffer_load_dwordx4 v[20:23], v10, s[{S_WS}:{S_WS+3}], s74 offen offset:1024 sc0 sc1")
        a.e(f"s_lshr_b32 s74, s{sW_}, 1"); a.e("s_mul_i32 s74, s74, 4608"); a.e(f"s_add_u32 s76, s74, {L_UB}"); a.e("s_add_u32 s74, s76, s75")
        a.e("v_add_u32 v11, s74, v10")
        a.e("v_mov_b32 v24, 0"); a.e("v_mov_b32 v25, 0"); a.e("v_lshl_add_u32 v12, v0, 3, s76")
        a.e("ds_write_b64 v12, v[24:25]")
        a.e("ds_write_b128 v11, v[16:19] offset:512"); a.e("ds_write_b128 v11, v[20:23] offset:1536")
    def conv(self, a):
        a.e("v_and_b32 v11, 15, v0"); a.e("v_lshrrev_b32 v12, 4, v0")
        a.e("v_and_b32 v14, 1, v12"); a.e("v_lshrrev_b32 v15, 1, v12")
        a.e("v_sub_u32 v16, 2047, v11"); a.e("v_lshl_add_u32 v16, v14, 3, v16"); a.e("v_lshlrev_b32 v17, 4, v15"); a.e("v_sub_u32 v16, v16, v17")
        a.e("v_and_b32 v17, 3, v16"); a.e("v_sub_u32 v16, v16, v17")
        a.e("v_mul_u32_u24 v17, 4160, v17"); a.e("v_lshl_add_u32 v16, v16, 1, v17")
        a.e(f"s_lshr_b32 s74, s{sW_}, 1"); a.e("s_mul_i32 s75, s74, 16640"); a.e(f"s_and_b32 s76, s{sW_}, 1"); a.e("s_lshl_b32 s76, s76, 8")
        a.e(f"s_add_u32 s75, s75, {L_S}"); a.e("s_sub_u32 s75, s75, s76"); a.e(f"s_sub_u32 s75, s75, {32*118}")
        a.e("v_add_u32 v28, s75, v16")
        a.e("v_sub_u32 v16, v11, v15"); a.e("v_lshlrev_b32 v16, 5, v16"); a.e("v_lshl_add_u32 v16, v14, 4, v16")
        a.e("s_mul_i32 s75, s74, 4608"); a.e(f"s_add_u32 s75, s75, {L_UB + 512 - 192}"); a.e("s_sub_u32 s75, s75, s76")
        a.e("v_add_u32 v29, s75, v16")
        def loads(o, rho):
            T = 32 + 64*(rho & 1); U = T + 32
            for m in range(8):
                off = 32*(118 - (2*rho + 16*m))
                o.e(f"ds_read_b64 v[{T+4*m}:{T+4*m+1}], v28 offset:{off}"); o.e(f"ds_read_b64 v[{T+4*m+2}:{T+4*m+3}], v28 offset:{off+8}")
                o.e(f"ds_read_b128 v[{U+4*m}:{U+4*m+3}], v29 offset:{512*m + 32*(6-2*rho)}")
        ACC = 160
        order = [(i, m) for tot in range(8) for i in range(8) for m in range(i+1) if max(m, i-m) == tot]
        loads(a, 0)
        for rho in range(4):
            T = 32 + 64*(rho & 1); U = T + 32
            mm = Asm(); seen = set()
            for (i, m) in order:
                c = '0' if (rho == 0 and i not in seen) else f"v[{ACC+4*i}:{ACC+4*i+3}]"
                seen.add(i)
                mm.e(f"v_mfma_f32_16x16x32_bf16 v[{ACC+4*i}:{ACC+4*i+3}], v[{T+4*m}:{T+4*m+3}], v[{U+4*(i-m)}:{U+4*(i-m)+3}], {c}")
            if rho < 3:
                side = Asm(); loads(side, rho + 1)
                mm = interleave(mm, [[x] for x in side.ins], 1, 30)
            a.extend(mm)
        a.e(f"s_lshl_b32 s74, s{sW_}, 13"); a.e(f"s_add_u32 s74, s74, {L_RED}"); a.e("v_add_u32 v11, s74, v10")
        for i in range(8): a.e(f"ds_write_b128 v11, v[{ACC+4*i}:{ACC+4*i+3}] offset:{1024*i}")
        a.wait_all_lds(); a.e("s_barrier")
        a.e(f"s_and_b32 s75, s{sW_}, 1"); a.e("s_lshl_b32 s75, s75, 12"); a.e(f"s_and_b32 s74, s{sW_}, 2"); a.e("s_lshl_b32 s74, s74, 13")
        a.e("s_add_u32 s74, s74, s75"); a.e(f"s_add_u32 s74, s74, {L_RED}"); a.e("v_add_u32 v11, s74, v10")
        for i in range(4):
            a.e(f"ds_read_b128 v[{48+4*i}:{51+4*i}], v11 offset:{1024*i}"); a.e(f"ds_read_b128 v[{64+4*i}:{67+4*i}], v11 offset:{8192+1024*i}")
        for i in range(8): a.e(f"v_pk_add_f32 v[{48+2*i}:{49+2*i}], v[{48+2*i}:{49+2*i}], v[{64+2*i}:{65+2*i}]")
        for i in range(8): a.e(f"v_cvt_pk_bf16_f32 v{80+i}, v{48+2*i}, v{49+2*i}")
        a.e("v_and_b32 v11, 15, v0"); a.e("v_lshlrev_b32 v11, 5, v11"); a.e("v_lshrrev_b32 v12, 4, v0"); a.e("v_lshl_add_u32 v11, v12, 3, v11")
        a.e(f"s_lshl_b32 s74, s{sCHN}, 12"); a.e(f"s_and_b32 s75, s{sW_}, 1"); a.e("s_lshl_b32 s75, s75, 11"); a.e("s_add_u32 s74, s74, s75"); a.e(f"s_add_u32 s74, s74, {WS_YT}")
        for i in range(4): a.e(f"buffer_store_dwordx2 v[{80+2*i}:{81+2*i}], v11, s[{S_WSB}:{S_WSB+3}], s74 offen offset:{512*i}")

    def build(self):
        a = self.a
        self.prologue()
        self.b_ids(a)
        self.stamp(a, real=True); self.stamp(a)
        self.nonce_make_issue(a)
        self.b_loads(a)
        for g in range(3):
            for rq in range(4): a.extend(self.dma_x(g, rq, g, 'xa'))
        for g in range(7):
            a.extend(self.dma_w(g, 1, L_WK, 'wk')); a.extend(self.dma_w(g, 2, L_WV, 'wv'))
        self.stamp(a)
        self.read_wphi(a)
        a.wait_vm_tag('ut'); a.wait_all_lds(); a.e("s_barrier")
        self.stamp(a)
        self.ut_phase(a)
        self.stamp(a)
        self.kgen_setup(a)
        self.stamp(a)
        self.kgen_round(a, 0); self.stamp(a); self.kgen_round(a, 1)
        self.stamp(a)
        self.kgen_finish(a)
        a.wait_all_lds(); a.e("s_barrier")
        self.stamp(a)
        self.expand(a)
        self.stamp(a)
        a.wait_vm_tag('xa')
        self.nonce_make_publish(a)
        self.read_x(a, [0, 1, 2], [0, 1, 2])
        a.wait_all_lds()
        for g in range(3, 7):
            for rq in range(4): a.extend(self.dma_x(g, rq, g - 3, 'xb'))
        a.wait_vm_tag('xb')
        self.read_x(a, [3, 4, 5, 6], [0, 1, 2, 3])
        a.wait_all_vm(); a.wait_all_lds()
        a.e("s_barrier")
        self.stamp(a)
        self.gemm(a, [(8, 32, 'T'), (9, 48, 'N')])
        a.e("s_barrier")
        self.stamp(a)
        for g in range(7): a.extend(self.dma_w(g, 0, L_WK, 'wq'))
        self.kv_partial(a)
        self.nonce_get(a)
        a.e("s_barrier")
        a.e(f"s_lshl_b32 s75, s{sH}, 4"); a.e(f"s_add_u32 s75, s75, s{sRB}"); a.e("s_lshl_b32 s75, s75, 2"); a.e(f"s_add_u32 s75, s75, {WS_FLAG + 4096}")
        self.flag_set(a, 75)
        a.e("s_lshl_b32 s75, s2, 2"); a.e(f"s_add_u32 s75, s75, {WS_FLAG + 8192}")
        self.flag_set(a, 75)
        self.stamp(a)
        self.q_phase(a)
        self.stamp(a)
        a.e(f"s_lshl_b32 s75, s{sCB}, 7"); a.e(f"s_add_u32 s75, s75, {WS_FLAG + 8192}")
        self.flag_wait(a, 75, 32)
        self.conv_load_u(a)
        a.wait_all_lds(); a.e("s_barrier")
        self.stamp(a)
        self.conv(a)
        self.stamp(a)
        a.e(f"s_lshl_b32 s75, s{sH}, 6"); a.e(f"s_add_u32 s75, s75, {WS_FLAG + 4096}")
        self.flag_wait(a, 75, 16)
        self.o_phase(a)
        self.stamp(a)
        a.wait_all_vm()
        self.stamp(a, real=True)
        self.stamp_out(a)
        a.label("L_k1_end")
        a.e("s_endpgm")
        a.label("L_k1_code_end")
        body, ins = finalize(a)
        self.ins = ins
        tab = ".p2align 6\n.type L_tab,@object\nL_tab:\n" + tables.as_dwords(tables.ident_frags()) + tables.as_dwords(tables.sel_frags()) + tables.as_dwords(tables.gather_table()) + ".size L_tab, .-L_tab\n"
        return kernel_text("k1_kernel", body + tab, vgpr=256, agpr=256), LDS_BYTES
if __name__ == "__main__":
    import sys
    k = K1(stamps=('-s' in sys.argv))
    (t, kd), lds = k.build()
    open("k1.s", "w").write(file_text([("k1_kernel", 256, 256, lds)], [(t, kd)]))
    print("instructions", len(k.ins), "stamps", k.nst)
```

```python
from common import *
def gen_k2(label="k2_kernel"):
    a = Asm()
    S_WO, S_U, S_D, S_OUT, S_WS = 8, 12, 16, 20, 24
    LO, LW, LY = 0, 65536, 65536 + 58368
    LDS = LY + 8192
    a.e("s_cmp_ge_u32 s2, 224"); a.e("s_cbranch_scc1 L_k2_end")
    a.e("s_load_dwordx4 s[28:31], s[0:1], 24")
    a.e("s_load_dwordx4 s[32:35], s[0:1], 80")
    a.e("s_load_dwordx2 s[36:37], s[0:1], 104")
    a.e("s_and_b32 s3, s2, 7"); a.e("s_lshl_b32 s3, s3, 2"); a.e("s_bfe_u32 s4, s2, 0x20003"); a.e("s_add_u32 s3, s3, s4")
    a.e("s_lshr_b32 s4, s2, 5")
    a.e("v_lshrrev_b32 v1, 6, v0"); a.e("v_and_b32 v0, 63, v0")
    a.e("v_readfirstlane_b32 s5, v1")
    a.e("s_waitcnt lgkmcnt(0)")
    srd(a, S_WO, 'wo', 28); srd(a, S_U, 'u', 30); srd(a, S_D, 'D', 32); srd(a, S_OUT, 'out', 34); srd(a, S_WS, 'ws', 36)
    a.e("v_lshlrev_b32 v2, 4, v0")
    a.e("s_lshl_b32 s40, s3, 16"); a.e("s_lshl_b32 s41, s5, 14"); a.e("s_add_u32 s40, s40, s41")
    a.e(f"s_add_u32 s40, s40, {WS_O}") if WS_O else None
    a.e("s_mov_b32 s42, s41")
    for i in range(16):
        a.e("s_mov_b32 m0, s42"); a.e("s_add_u32 s42, s42, 1024")
        a.e(f"buffer_load_dwordx4 v2, s[{S_WS}:{S_WS+3}], s40 offen lds", tag='o')
        a.e("s_add_u32 s40, s40, 1024")
    a.e("v_lshrrev_b32 v3, 3, v0"); a.e("v_mul_u32_u24 v3, 896, v3")
    a.e("v_and_b32 v4, 7, v0"); a.e("v_bfe_u32 v5, v0, 4, 1"); a.e("v_lshlrev_b32 v5, 2, v5"); a.e("v_xor_b32 v4, v4, v5")
    a.e("v_lshl_add_u32 v3, v4, 4, v3")
    a.e("s_mul_i32 s40, s5, 100352"); a.e("s_lshl_b32 s41, s4, 7"); a.e("s_add_u32 s40, s40, s41")
    a.e("s_mul_i32 s42, s5, 14336"); a.e(f"s_add_u32 s42, s42, {LW}")
    for i in range(14):
        a.e("s_mov_b32 m0, s42"); a.e("s_add_u32 s42, s42, 1024")
        a.e(f"buffer_load_dwordx4 v3, s[{S_WO}:{S_WO+3}], s40 offen lds", tag='w')
        a.e("s_add_u32 s40, s40, 7168")
    a.e("v_lshrrev_b32 v5, 3, v0"); a.e("v_lshlrev_b32 v5, 12, v5"); a.e("v_and_b32 v6, 7, v0"); a.e("v_lshl_add_u32 v5, v6, 4, v5")
    a.e("s_lshl_b32 s40, s4, 18"); a.e("s_lshl_b32 s41, s5, 16"); a.e("s_add_u32 s40, s40, s41"); a.e("s_lshl_b32 s41, s3, 7"); a.e("s_add_u32 s40, s40, s41")
    a.e(f"s_add_u32 s40, s40, {WS_YT}")
    a.e("s_lshl_b32 s42, s5, 11"); a.e(f"s_add_u32 s42, s42, {LY}")
    for i in range(2):
        a.e("s_mov_b32 m0, s42"); a.e("s_add_u32 s42, s42, 1024")
        a.e(f"buffer_load_dwordx4 v5, s[{S_WS}:{S_WS+3}], s40 offen lds", tag='y')
        a.e("s_add_u32 s40, s40, 32768")
    a.e("v_and_b32 v6, 15, v0"); a.e("v_lshrrev_b32 v7, 4, v0")
    a.e("s_lshl_b32 s40, s3, 6"); a.e("s_lshl_b32 s41, s5, 4"); a.e("s_add_u32 s40, s40, s41")
    a.e("v_add_u32 v8, s40, v6")
    a.e("v_mul_u32_u24 v9, 896, v8"); a.e("v_lshl_add_u32 v9, v7, 4, v9"); a.e("s_lshl_b32 s41, s4, 7")
    a.e(f"buffer_load_dwordx4 v[100:103], v9, s[{S_U}:{S_U+3}], s41 offen")
    a.e(f"buffer_load_dwordx4 v[104:107], v9, s[{S_U}:{S_U+3}], s41 offen offset:64")
    a.e("v_lshlrev_b32 v10, 4, v7")
    a.e(f"buffer_load_dwordx4 v[108:111], v10, s[{S_D}:{S_D+3}], s41 offen")
    a.e(f"buffer_load_dwordx4 v[112:115], v10, s[{S_D}:{S_D+3}], s41 offen offset:64")
    a.e("s_and_b32 s43, s5, 1"); a.e("s_lshr_b32 s44, s5, 1")
    a.e("s_lshl_b32 s45, s43, 15"); a.e("v_lshl_add_u32 v11, v0, 4, s45")
    a.e("v_lshrrev_b32 v12, 2, v6")
    a.e("v_lshrrev_b32 v13, 1, v12"); a.e("v_xor_b32 v13, s44, v13"); a.e("v_lshlrev_b32 v13, 6, v13")
    a.e("v_and_b32 v14, 1, v7"); a.e("v_lshl_add_u32 v13, v14, 5, v13"); a.e("v_and_b32 v14, 3, v6"); a.e("v_lshl_add_u32 v13, v14, 3, v13")
    a.e("v_lshrrev_b32 v14, 1, v7")
    a.e("v_lshl_add_u32 v15, v14, 2, v12"); a.e("v_lshl_add_u32 v15, v15, 7, v13"); a.e(f"v_add_u32 v15, {LW}, v15")
    a.wait_all_vm()
    a.e("s_barrier")
    acc = "v[16:31]"
    first = True
    bufs = [(32, 36), (40, 44), (48, 52), (56, 60)]
    steps = [(hd, s) for hd in range(16) for s in range(2)]
    def issue(k):
        hd, s = steps[k]; A, B = bufs[k % 4]
        o0 = (28 * hd + (0 if s == 0 else 16)) * 128
        o1 = (28 * hd + (8 if s == 0 else 20)) * 128
        a.e(f"ds_read_b64_tr_b16 v[{A}:{A+1}], v15 offset:{o0}")
        a.e(f"ds_read_b64_tr_b16 v[{A+2}:{A+3}], v15 offset:{o1}")
        a.e(f"ds_read_b128 v[{B}:{B+3}], v11 offset:{(hd*2+s)*1024}")
    for k in range(3): issue(k)
    for k in range(32):
        if k + 3 < 32: issue(k + 3)
        A, B = bufs[k % 4]
        a.e(f"v_mfma_f32_32x32x16_bf16 {acc}, v[{A}:{A+3}], v[{B}:{B+3}], {'0' if k == 0 else acc}")
    a.e("v_lshl_add_u32 v64, v7, 3, v12"); a.e("v_lshlrev_b32 v64, 7, v64"); a.e("v_and_b32 v65, 3, v6"); a.e("v_lshl_add_u32 v64, v65, 3, v64")
    a.e("s_lshl_b32 s45, s5, 5"); a.e(f"s_add_u32 s45, s45, {LY}"); a.e("v_add_u32 v64, s45, v64")
    for cc in range(2):
        for be in range(2):
            a.e(f"ds_read_b64_tr_b16 v[{72+4*cc+2*be}:{73+4*cc+2*be}], v64 offset:{cc*4096 + be*512}")
    a.e("s_mov_b32 s46, 0xffff0000")
    for cc in range(2):
        for j in range(4):
            y, u, d = 72 + 4*cc + j, 100 + 4*cc + j, 108 + 4*cc + j
            a.e(f"v_lshlrev_b32 v80, 16, v{u}"); a.e(f"v_and_b32 v81, s46, v{u}")
            a.e(f"v_lshlrev_b32 v82, 16, v{d}"); a.e(f"v_and_b32 v83, s46, v{d}")
            a.e("v_mul_f32 v80, v80, v82"); a.e("v_mul_f32 v81, v81, v83")
            a.e("v_cvt_pk_bf16_f32 v80, v80, v81")
            a.e("v_and_b32 v81, s46, v80"); a.e("v_lshlrev_b32 v80, 16, v80")
            a.e(f"v_lshlrev_b32 v82, 16, v{y}"); a.e(f"v_and_b32 v83, s46, v{y}")
            a.e("v_add_f32 v80, v80, v82"); a.e("v_add_f32 v81, v81, v83")
            a.e(f"v_cvt_pk_bf16_f32 v{88+4*cc+j}, v80, v81")
    a.e("v_mul_u32_u24 v9, 1792, v8"); a.e("v_lshl_add_u32 v9, v7, 4, v9"); a.e("s_lshl_b32 s41, s4, 7"); a.e("s_add_u32 s41, s41, 896")
    a.e(f"buffer_store_dwordx4 v[88:91], v9, s[{S_OUT}:{S_OUT+3}], s41 offen")
    a.e(f"buffer_store_dwordx4 v[92:95], v9, s[{S_OUT}:{S_OUT+3}], s41 offen offset:64")
    for q in range(4):
        a.e(f"v_cvt_pk_bf16_f32 v{32+2*q}, v{16+4*q}, v{17+4*q}"); a.e(f"v_cvt_pk_bf16_f32 v{33+2*q}, v{18+4*q}, v{19+4*q}")
    a.e("v_permlane32_swap_b32 v32, v34"); a.e("v_permlane32_swap_b32 v33, v35")
    a.e("v_permlane32_swap_b32 v36, v38"); a.e("v_permlane32_swap_b32 v37, v39")
    a.e("v_and_b32 v2, 31, v0"); a.e("v_lshrrev_b32 v3, 5, v0")
    a.e("s_lshl_b32 s40, s3, 6"); a.e("s_lshl_b32 s41, s43, 5"); a.e("s_add_u32 s40, s40, s41"); a.e("v_add_u32 v2, s40, v2")
    a.e("v_mul_u32_u24 v2, 1792, v2"); a.e("v_lshl_add_u32 v2, v3, 4, v2")
    a.e("s_lshl_b32 s41, s4, 7"); a.e("s_lshl_b32 s42, s44, 6"); a.e("s_add_u32 s41, s41, s42")
    a.e(f"buffer_store_dwordx4 v[32:35], v2, s[{S_OUT}:{S_OUT+3}], s41 offen")
    a.e(f"buffer_store_dwordx4 v[36:39], v2, s[{S_OUT}:{S_OUT+3}], s41 offen offset:32")
    a.label("L_k2_end")
    a.e("s_endpgm")
    body, ins = finalize(a)
    return kernel_text(label, body, vgpr=128), LDS
if __name__ == "__main__":
    (t, kd), lds = gen_k2()
    open("k2.s", "w").write(file_text([("k2_kernel", 224, 256, lds)], [(t, kd)]))
    print("lds", lds)
```

```python
import numpy as np
def slot_p(h, s, e): return (e & 3) + 8 * (e >> 2) + 4 * h + 16 * s
def ident_frags():
    t = np.zeros((2, 64, 8), np.uint16)
    for s in range(2):
        for l in range(64):
            for e in range(8):
                if (l & 31) == slot_p(l >> 5, s, e): t[s, l, e] = 0x3F80
    return t
def sel_frags():
    t = np.zeros((2, 64, 8), np.uint16)
    for k in range(2):
        for l in range(64):
            i, g = l & 15, l >> 4
            if g == (i >> 2): t[k, l, 4 * k + (i & 3)] = 0x3F80
    return t
def kidx(l):
    if l < 256: return l
    f = np.array([l], np.float32).view(np.uint32)[0]
    b = int((f + 0x7FFF + ((f >> 16) & 1)) >> 16)
    return b - 0x4280
ZSLOT = 700
def gather_table():
    t = np.zeros(2080, np.uint16)
    for x in range(2080):
        l = 2047 - x
        t[x] = 4 * (kidx(l) if l >= 0 else ZSLOT)
    return t
def as_dwords(arr):
    b = np.ascontiguousarray(arr).view(np.uint32).ravel()
    out = []
    for i in range(0, len(b), 8):
        out.append(".long " + ", ".join("0x%08x" % v for v in b[i:i+8]))
    return "\n".join(out) + "\n"
if __name__ == "__main__":
    print([kidx(l) for l in (255, 256, 257, 258, 259, 511, 512, 1023, 1024, 2046, 2047)])
```

```python
import sys
from common import *
import k1, k2
def build(stamps=False, path="full.s"):
    k = k1.K1(stamps=stamps)
    (t1, kd1), lds1 = k.build()
    (t2, kd2), lds2 = k2.gen_k2()
    hdr = open("cdna_kernels/" + NAME + ".s.ref").read().split("; Override launch")[0]
    s = file_text([("k1_kernel", 256, 256, lds1), ("k2_kernel", 224, 256, lds2)], [(t1, kd1), (t2, kd2)], hdr)
    open(path, "w").write(s)
    return k
if __name__ == "__main__":
    k = build(stamps=('-s' in sys.argv))
    print("k1 instrs", len(k.ins))
```
